```python
import torch

def _softmax(x, axis=-1):
    return torch.softmax(x, dim=axis)
def _gelu(x):
    return torch.nn.functional.gelu(x, approximate="tanh")
def _silu(x):
    return torch.nn.functional.silu(x)
def _sigmoid(x):
    return torch.sigmoid(x)
def _layernorm(x, axis=-1, eps=1e-5):
    m = x.mean(dim=axis, keepdim=True)
    v = x.var(dim=axis, keepdim=True, unbiased=False)
    return (x - m) / torch.sqrt(v + eps)
def _scatter_add(tgt, idx, src, axis=0):
    return tgt.clone().index_add_(axis, idx, src)
def _segment_sum(src, seg, n):
    out = torch.zeros((n,) + src.shape[1:], dtype=src.dtype)
    return out.index_add_(0, seg, src)
def _pad(x, pw):
    flat = tuple(v for pair in reversed(pw) for v in pair)
    return torch.nn.functional.pad(x, flat)

kernel_name = 'recurrent_scan__compressed_kv_cla__moe_arch_mod__prompt'

def setup_inputs():

    _w = (lambda a: (lambda t: t.to(torch.bfloat16) if t.is_floating_point() else t)(torch.as_tensor(a)))
    def _A_setup():
        B, H, Sq, Sk, D, M = 1, 32, 2048, 2048, 128, 512
        Dc = 4 * D
        return {
            "x": _w((lambda *s: torch.randn(*s, dtype=torch.bfloat16) * 0.05)(B, Sq, M)),
            "c_kv": _w((lambda *s: torch.randn(*s, dtype=torch.bfloat16) * 0.2)(B, Sk, Dc)),
            "w_q": _w((lambda *s: torch.randn(*s, dtype=torch.bfloat16) * 3.2)(M, H, D) * (M ** -0.5)),
            "w_uk": _w((lambda *s: torch.randn(*s, dtype=torch.bfloat16) * 3.2)(Dc, H, D) * (Dc ** -0.5)),
            "w_uv": _w((lambda *s: torch.randn(*s, dtype=torch.bfloat16) * 0.2)(Dc, H, D) * (Dc ** -0.5)),
            "w_o": _w((lambda *s: torch.randn(*s, dtype=torch.bfloat16) * 0.2)(H, D, M) * ((H * D) ** -0.5)),
        }
    _A_in = _A_setup()

    def _B_setup():
        B, S, D, F, C = 1, 2048, 512, 1792, 1
        return {
            "x": _w((lambda *s: torch.randn(*s, dtype=torch.bfloat16) * 0.05)(B, S, D)),
            "w_r": _w((lambda *s: torch.randn(*s, dtype=torch.bfloat16) * 1.6)(D)),
            "w_gate": _w((lambda *s: torch.randn(*s, dtype=torch.bfloat16) * 0.2)(D, F)),
            "w_up": _w((lambda *s: torch.randn(*s, dtype=torch.bfloat16) * 0.2)(D, F)),
            "w_down": _w((lambda *s: torch.randn(*s, dtype=torch.bfloat16) * 0.2)(F, D)),
        }
    _B_in = _B_setup()

    return {
        "A_x": _A_in["x"],
        "A_c_kv": _A_in["c_kv"],
        "A_w_q": _A_in["w_q"],
        "A_w_uk": _A_in["w_uk"],
        "A_w_uv": _A_in["w_uv"],
        "A_w_o": _A_in["w_o"],
        "B_x": _B_in["x"],
        "B_w_r": _B_in["w_r"],
        "B_w_gate": _B_in["w_gate"],
        "B_w_up": _B_in["w_up"],
        "B_w_down": _B_in["w_down"],
    }

def reference(A_x, A_c_kv, A_w_q, A_w_uk, A_w_uv, A_w_o, B_x, B_w_r, B_w_gate, B_w_up, B_w_down):
    def _A_ref(x, c_kv, w_q, w_uk, w_uv, w_o):
        B, Sq, M = x.shape[0], x.shape[1], x.shape[2]
        Sk = c_kv.shape[1]
        H, D = w_q.shape[1], w_q.shape[2]
        q = torch.einsum("bqm,mhd->bhqd", x, w_q)
        k = torch.einsum("bkc,chd->bhkd", c_kv, w_uk)
        v = torch.einsum("bkc,chd->bhkd", c_kv, w_uv)
        scores = torch.einsum("bhqd,bhkd->bhqk", q, k) * (D ** -0.5)
        off = Sk - Sq
        qi = torch.arange(Sq)[:, None]
        kj = torch.arange(Sk)[None, :]
        cmask = kj <= (qi + off)
        scores = torch.where(cmask[None, None], scores, -1e9)
        p = _softmax(scores, axis=-1)
        ctx = torch.einsum("bhqk,bhkd->bhqd", p, v)
        return torch.einsum("bhqd,hdm->bqm", ctx, w_o)

    def _B_ref(x, w_r, w_gate, w_up, w_down):
        B, S, D = x.shape
        C = 1
        r = x @ w_r
        idx = torch.argsort(-r, axis=-1)[:, :C]
        idx_e = (lambda x, n, axis: torch.repeat_interleave(x, n, dim=axis))(idx.reshape(B, C, 1), D, axis=2)
        x_sel = (lambda x, i, axis: torch.take_along_dim(x, i, dim=axis))(x, idx_e, axis=1)
        g = _silu(x_sel @ w_gate)
        u = x_sel @ w_up
        y = (g * u) @ w_down
        r_sel = _sigmoid((lambda x, i, axis: torch.take_along_dim(x, i, dim=axis))(r, idx, axis=1))
        y = y * r_sel.reshape(B, C, 1)
        b_off = (torch.arange(B) * S).reshape(B, 1)
        flat_idx = (idx + b_off).reshape(B * C)
        zero = (x * 0.0).reshape(B * S, D)
        upd = _scatter_add(zero, flat_idx, y.reshape(B * C, D), axis=0)
        return x + upd.reshape(B, S, D)

    x = A_x
    xn = _layernorm(x, axis=-1)
    s = _A_ref(xn, A_c_kv, A_w_q, A_w_uk, A_w_uv, A_w_o)
    g = _silu(_B_ref(xn, B_w_r, B_w_gate, B_w_up, B_w_down))
    return x + s * g
```

```python
import re

class Asm:
    def __init__(self):
        self.lines = []
        self.vm = []
        self.lg = []
        self._uid = 0
    def uid(self, p='L'):
        self._uid += 1
        return f'{p}_{self._uid}'
    def __call__(self, s):
        for l in s.strip('\n').split('\n'):
            l = l.strip()
            if l:
                self.lines.append('    ' + l if not l.endswith(':') else l)
    def c(self, s):
        self.lines.append('    ; ' + s)
    def label(self, l):
        self.lines.append(l + ':')
    def vmem(self, s, tag=None):
        self(s); self.vm.append(tag)
    def lds(self, s, tag=None):
        self(s); self.lg.append(tag)
        assert len(self.lg) <= 15 or True
    def wait_vm(self, tag):
        tags = tag if isinstance(tag, (set, list)) else [tag]
        idx = [i for i, t in enumerate(self.vm) if t in tags]
        if not idx: return
        n = len(self.vm) - 1 - max(idx)
        n = min(n, 63)
        self(f's_waitcnt vmcnt({n})')
        self.vm = self.vm[len(self.vm) - n:] if n else []
    def wait_lg(self, tag):
        tags = tag if isinstance(tag, (set, list)) else [tag]
        idx = [i for i, t in enumerate(self.lg) if t in tags]
        if not idx: return
        n = len(self.lg) - 1 - max(idx)
        n = min(n, 15)
        self(f's_waitcnt lgkmcnt({n})')
        self.lg = self.lg[len(self.lg) - n:] if n else []
    def wait_all(self, vm=True, lg=True):
        s = 's_waitcnt'
        if vm: s += ' vmcnt(0)'; self.vm = []
        if lg: s += ' lgkmcnt(0)'; self.lg = []
        self(s)
    def text(self):
        return '\n'.join(self.lines) + '\n'

def vr(b, n=1):
    return f'v{b}' if n == 1 else f'v[{b}:{b+n-1}]'
def sr(b, n=1):
    return f's{b}' if n == 1 else f's[{b}:{b+n-1}]'

def kernel_text(name, body, vgpr, sgpr=102, accum=None, extra=''):
    if accum is None:
        accum = min(256, (vgpr + 3) // 4 * 4)
    code = f'''
.text
.globl {name}
.p2align 8
.type {name},@function
{name}:
{body}'''
    desc = f'''
.section .rodata,"a"
.p2align 6
.amdhsa_kernel {name}
  .amdhsa_next_free_vgpr {vgpr}
  .amdhsa_next_free_sgpr {sgpr}
  .amdhsa_accum_offset {accum}
  .amdhsa_group_segment_fixed_size 0
  .amdhsa_kernarg_size 112
  .amdhsa_user_sgpr_count 2
  .amdhsa_user_sgpr_kernarg_segment_ptr 1
  .amdhsa_system_sgpr_workgroup_id_x 1
  .amdhsa_float_denorm_mode_32 3
  .amdhsa_float_denorm_mode_16_64 3
{extra}.end_amdhsa_kernel
'''
    return code + desc

_reg = re.compile(r'\b([vsa])(\d+)\b|\b([vsa])\[(\d+):(\d+)\]|\b(vcc|exec|m0|scc|vcc_lo|vcc_hi|exec_lo|exec_hi)\b')
TRANS = ('v_exp_f32', 'v_log_f32', 'v_rcp_f32', 'v_rsq_f32', 'v_sqrt_f32', 'v_sin_f32', 'v_cos_f32', 'v_rcp_iflag_f32')

def regs_of(op):
    out = set()
    for m in _reg.finditer(op):
        if m.group(1): out.add((m.group(1), int(m.group(2))))
        elif m.group(3):
            for i in range(int(m.group(4)), int(m.group(5)) + 1): out.add((m.group(3), i))
        else:
            g = m.group(6)
            if g.startswith('vcc'): out.add(('vcc', 0))
            elif g.startswith('exec'): out.add(('exec', 0))
            else: out.add((g, 0))
    return out

def split_ops(rest):
    ops, cur, depth = [], '', 0
    for ch in rest:
        if ch == '[': depth += 1
        if ch == ']': depth -= 1
        if ch == ',' and depth == 0:
            ops.append(cur.strip()); cur = ''
        else: cur += ch
    if cur.strip(): ops.append(cur.strip())
    return ops

class Ins:
    pass

def parse(text):
    insts, labels = [], {}
    for ln, raw in enumerate(text.split('\n')):
        l = raw.split(';')[0].strip()
        if not l or l.startswith('.'): continue
        if l.endswith(':'):
            labels[l[:-1]] = len(insts); continue
        p = l.split(None, 1)
        I = Ins(); I.op = p[0]; I.ln = ln + 1; I.text = l
        rest = p[1] if len(p) > 1 else ''
        ops = split_ops(rest)
        I.mods = ''
        if ops:
            q = ops[-1].split(None, 1)
            if len(q) > 1 and not q[0].endswith(('(',)):
                ops[-1] = q[0]; I.mods = q[1]
        I.ops = ops
        op = I.op
        I.valu = op.startswith('v_') and not op.startswith('v_mfma')
        I.mfma = op.startswith('v_mfma')
        I.salu = op.startswith('s_')
        I.vmem = op.startswith(('buffer_', 'global_', 'flat_'))
        I.ds = op.startswith('ds_')
        I.dpp = ('row_' in I.mods or 'quad_perm' in I.mods or 'wave_' in I.mods or op.endswith('_dpp'))
        I.trans = op.replace('_e32', '').replace('_e64', '') in TRANS
        R = [regs_of(o) for o in ops]
        W, Rd = set(), set()
        I.srcC = set(); I.srcAB = set(); I.sdata = set()
        if I.mfma:
            W = R[0]; I.srcAB = R[1] | R[2]; I.srcC = R[3]; Rd = I.srcAB | I.srcC
            I.passes = 8 if '32x32x16' in op else 4
        elif I.valu:
            if op.startswith('v_cmpx'):
                W = R[0] | {('exec', 0)}; Rd = set().union(*R[1:])
            elif op.startswith('v_cmp'):
                W = R[0]; Rd = set().union(*R[1:])
            elif op.startswith(('v_add_co', 'v_sub_co', 'v_addc_co', 'v_subb_co', 'v_subrev_co', 'v_div_scale', 'v_mad_u64')):
                W = R[0] | R[1]; Rd = set().union(*R[2:])
            elif op.startswith('v_permlane') and 'swap' in op:
                W = R[0] | R[1]; Rd = R[0] | R[1]
            elif op.startswith('v_nop'):
                pass
            else:
                W = R[0]; Rd = set().union(*R[1:]) if len(R) > 1 else set()
                if op.startswith(('v_fmac', 'v_dot2c', 'v_pk_fmac', 'v_writelane')) or I.dpp: Rd |= R[0]
                if op.startswith('v_cndmask') and len(ops) == 3: Rd |= {('vcc', 0)}
                if op.startswith('v_div_fmas'): Rd |= {('vcc', 0)}
        elif I.vmem:
            lds = ' lds' in (' ' + I.mods)
            if 'store' in op or ('atomic' in op):
                if op.startswith('buffer'):
                    I.sdata = R[0]; Rd = set().union(*R)
                else:
                    Rd = set().union(*R); I.sdata = R[1]
                if 'atomic' in op and 'sc0' in I.mods: W = R[0]
            elif lds or 'load_lds' in op:
                Rd = set().union(*R) | {('m0', 0)}
                I.ldsdma = True
            else:
                W = R[0]; Rd = set().union(*R[1:])
        elif I.ds:
            if op.startswith(('ds_write', 'ds_add', 'ds_max', 'ds_min')) and 'rtn' not in op:
                Rd = set().union(*R)
            else:
                W = R[0]; Rd = set().union(*R[1:])
        elif I.salu:
            if op.startswith(('s_cmp', 's_cbranch', 's_branch', 's_waitcnt', 's_barrier', 's_nop', 's_endpgm', 's_setprio', 's_sleep', 's_bitcmp')):
                Rd = set().union(*R) if R else set()
            else:
                W = R[0] if R else set(); Rd = set().union(*R[1:]) if len(R) > 1 else set()
                if 'saveexec' in op: W |= {('exec', 0)}
        I.W, I.R = W, Rd
        I.ws = 1
        if op == 's_nop': I.ws = int(ops[0], 0) + 1
        insts.append(I)
    return insts, labels

def check_hazards(text, verbose=True):
    insts, labels = parse(text)
    n = len(insts)
    def succ(i):
        I = insts[i]
        if I.op == 's_endpgm': return []
        if I.op == 's_branch': return [labels[I.ops[0]]]
        s = [i + 1] if i + 1 < n else []
        if I.op.startswith('s_cbranch'): s.append(labels[I.ops[0]])
        return s
    isv = lambda s: {r for r in s if r[0] in 'va'}
    iss = lambda s: {r for r in s if r[0] in ('s', 'vcc')}
    def need(P, C):
        k = 0
        if P.valu:
            pw = isv(P.W)
            if C.mfma and pw & C.R: k = max(k, 2)
            if C.mfma and ('exec', 0) in P.W: k = max(k, 4)
            if P.trans and C.valu and not C.trans and pw & C.R: k = max(k, 1)
            if P.trans and (C.vmem or C.ds) and pw & C.R: k = max(k, 1)
            ps = iss(P.W)
            if ps:
                if C.valu and ps & C.R: k = max(k, 2)
                if C.valu and C.op.startswith(('v_readlane', 'v_writelane')) and ps & regs_of(C.ops[2]): k = max(k, 4)
                if C.valu and C.op.startswith('v_div_fmas') and ('vcc', 0) in ps: k = max(k, 4)
                if C.vmem and ps & C.R: k = max(k, 5)
                if C.salu and ps & C.R: k = max(k, 1)
            if C.op.startswith(('v_readlane', 'v_readfirstlane')) and pw & C.R: k = max(k, 1)
            if C.valu and C.dpp and pw & C.R: k = max(k, 2)
            if C.valu and C.dpp and ('exec', 0) in P.W: k = max(k, 5)
            if C.op.startswith('v_permlane') and pw & C.R: k = max(k, 2)
            if C.op.startswith(('v_readlane', 'v_readfirstlane', 'v_writelane', 'v_permlane')) and ('exec', 0) in P.W: k = max(k, 4)
        if P.mfma:
            p8 = P.passes == 8
            if C.mfma:
                if P.W & C.srcAB: k = max(k, 12 if p8 else 8)
                if P.W & C.srcC and not (P.W == C.srcC and P.passes == C.passes): k = max(k, 10 if p8 else 6)
                if P.W & C.W and not (P.W == C.W and P.passes == C.passes): k = max(k, 10 if p8 else 6)
            else:
                if (C.valu or C.vmem or C.ds) and P.W & (C.R | C.W): k = max(k, 12 if p8 else 8)
                if C.valu and P.srcC & C.W: k = max(k, 7 if p8 else 3)
        if P.salu and ('m0', 0) in P.W and getattr(C, 'ldsdma', False): k = max(k, 1)
        if P.vmem and len(P.sdata) >= 3 and P.sdata & C.W:
            k = max(k, 2 if C.valu else 1)
        if P.ds and P.op.startswith(('ds_write_b128', 'ds_write_b96')) and P.R & isv(C.W) and C.valu:
            k = max(k, 1)
        return k
    probs = []
    for i, P in enumerate(insts):
        if not (P.valu or P.mfma or P.salu or P.vmem or P.ds): continue
        stack = [(j, 0) for j in succ(i)]
        seen = {}
        while stack:
            j, d = stack.pop()
            if d >= 12: continue
            if j in seen and seen[j] <= d: continue
            seen[j] = d
            C = insts[j]
            k = need(P, C)
            if k > d:
                probs.append((P, C, k, d))
            for s in succ(j):
                stack.append((s, d + C.ws))
    if verbose:
        for P, C, k, d in probs[:40]:
            print(f'HAZARD need {k} have {d}: L{P.ln} [{P.text}]  ->  L{C.ln} [{C.text}]')
    return probs
```

```python
from asmlib import *
WS_XN  = 0x0000000
WS_R   = 0x0200000
WS_Y   = 0x0210000
WS_SEL = 0x0220000
WS_K   = 0x1000000
WS_V   = 0x2000000
WS_CTX = 0x3000000
WS_LOW_SIZE = 0x0300000
A_X, A_CKV, A_WQ, A_WUK, A_WUV, A_WO, A_BX, A_WR, A_WG, A_WU, A_WD, A_OUT, A_DBG, A_WS = [8*i for i in range(14)]

def srd(a, d, lo, hi, size):
    if d != lo: a(f's_mov_b32 s{d}, s{lo}')
    a(f's_and_b32 s{d+1}, s{hi}, 0xffff')
    a(f's_mov_b32 s{d+2}, {size:#x}')
    a(f's_mov_b32 s{d+3}, 0x00020000')

def wave_sum(a, v, s0):
    a('s_nop 1')
    a(f'v_add_f32_dpp v{v}, v{v}, v{v} quad_perm:[1,0,3,2] row_mask:0xf bank_mask:0xf')
    a('s_nop 1')
    a(f'v_add_f32_dpp v{v}, v{v}, v{v} quad_perm:[2,3,0,1] row_mask:0xf bank_mask:0xf')
    a('s_nop 1')
    a(f'v_add_f32_dpp v{v}, v{v}, v{v} row_half_mirror row_mask:0xf bank_mask:0xf')
    a('s_nop 1')
    a(f'v_add_f32_dpp v{v}, v{v}, v{v} row_mirror row_mask:0xf bank_mask:0xf')
    a('s_nop 0')
    for i in range(4):
        a(f'v_readlane_b32 s{s0+i}, v{v}, {16*i}')
    a('s_nop 1')
    a(f'v_mov_b32 v{v}, s{s0}')
    for i in range(1, 4):
        a(f'v_add_f32 v{v}, s{s0+i}, v{v}')

def rne_bf16(a, d, s):
    a(f'v_cvt_pk_bf16_f32 v{d}, v{s}, v{s}')
    a(f'v_lshlrev_b32 v{d}, 16, v{d}')
```

```python
from common import *
import struct
def f2u(x): return struct.unpack('<I', struct.pack('<f', x))[0]
LOG2E = 1.4426950408889634

def silu_bf16(a, d, x, t):
    a(f'v_mul_f32 v{t}, {f2u(-LOG2E):#x}, v{x}')
    a(f'v_exp_f32 v{t}, v{t}')
    a('s_nop 0')
    a(f'v_add_f32 v{t}, 1.0, v{t}')
    a(f'v_rcp_f32 v{t}, v{t}')
    a('s_nop 0')
    a(f'v_mul_f32 v{d}, v{x}, v{t}')
    rne_bf16(a, d, d)

def ffn_job(a, V, sJ, sT, srdLow, srdG, srdU, srdD, vLane, vL16):
    G, U, D = V, V+32, V+64
    R = V+64
    XS = V+96
    AG = V+100
    T = V+116
    def ph0():
        for i in range(8):
            a(f's_mov_b32 s{sT}, {WS_R + i*1024}')
            a.vmem(f'buffer_load_dwordx4 {vr(R+4*i,4)}, v{vL16}, {srdLow}, s{sT} offen', 'fkey')
        a(f'v_mul_u32_u24 v{T}, {8*3584}, v{vLane}')
        a(f's_lshl_b32 s{sT+1}, s{sJ}, 4')
        for i in range(8):
            a(f's_add_u32 s{sT}, s{sT+1}, {i*3584}')
            a.vmem(f'buffer_load_dwordx4 {vr(G+4*i,4)}, v{T}, {srdG}, s{sT} offen', 'fw')
            a.vmem(f'buffer_load_dwordx4 {vr(U+4*i,4)}, v{T}, {srdU}, s{sT} offen', 'fw')
    def ph1():
        a(f'v_max3_u32 v{T}, v{R}, v{R+1}, v{R+2}')
        for j in range(3, 31, 2): a(f'v_max3_u32 v{T}, v{T}, v{R+j}, v{R+j+1}')
        a(f'v_max_u32 v{T}, v{T}, v{R+31}')
        for m in ('quad_perm:[1,0,3,2]', 'quad_perm:[2,3,0,1]', 'row_half_mirror', 'row_mirror'):
            a('s_nop 1')
            a(f'v_max_u32_dpp v{T}, v{T}, v{T} {m} row_mask:0xf bank_mask:0xf')
        a('s_nop 0')
        for i in range(4): a(f'v_readlane_b32 s{sT+i}, v{T}, {16*i}')
        a('s_nop 0')
        a(f's_max_u32 s{sT}, s{sT}, s{sT+1}')
        a(f's_max_u32 s{sT+2}, s{sT+2}, s{sT+3}')
        a(f's_max_u32 s{sT+4}, s{sT}, s{sT+2}')
        a(f's_and_b32 s{sT}, s{sT+4}, 0x7ff')
        a(f's_sub_u32 s{sT}, 2047, s{sT}')
        a(f's_lshr_b32 s{sT+1}, s{sT}, 5')
        a(f's_lshl_b32 s{sT+1}, s{sT+1}, 15')
        a(f's_and_b32 s{sT+2}, s{sT}, 31')
        a(f's_lshl_b32 s{sT+2}, s{sT+2}, 4')
        a(f's_add_u32 s{sT+1}, s{sT+1}, s{sT+2}')
        a(f'v_lshlrev_b32 v{T+1}, 9, v{vLane}')
        a.vmem(f'buffer_load_dwordx4 {vr(XS,4)}, v{T+1}, {srdLow}, s{sT+1} offen', 'fx')
        a(f's_lshl_b32 s{sT+1}, s{sJ}, 13')
        for i in range(8):
            if i % 4 == 0: a(f's_add_u32 s{sT+2}, s{sT+1}, {i*1024}')
            a.vmem(f'buffer_load_dwordx4 {vr(D+4*i,4)}, v{vL16}, {srdD}, s{sT+2} offen offset:{(i%4)*1024}', 'fd')
        L = a.uid('FF')
        a(f's_cmp_lg_u32 s{sJ}, 0')
        a(f's_cbranch_scc1 {L}')
        a(f'v_mov_b32 v{T+2}, s{sT+4}')
        a(f'v_mov_b32 v{T+3}, {WS_SEL}')
        a('s_mov_b64 exec, 1')
        a(f'buffer_store_dword v{T+2}, v{T+3}, {srdLow}, 0 offen')
        a('s_waitcnt vmcnt(0)')
        a('s_mov_b64 exec, -1')
        a.label(L)
    def ph2(i0, i1):
        def f():
            for i in range(i0, i1):
                if i % 2 == 0: a(f'v_lshlrev_b32 v{T}, 16, v{XS+i//2}')
                else: a(f'v_and_b32 v{T}, 0xffff0000, v{XS+i//2}')
                for which, W in ((0, G), (1, U)):
                    for j in range(4):
                        a(f'v_lshlrev_b32 v{T+1}, 16, v{W+4*i+j}')
                        a(f'v_and_b32 v{T+2}, 0xffff0000, v{W+4*i+j}')
                        d = AG + 8*which + 2*j
                        if i == 0:
                            a(f'v_mul_f32 v{d}, v{T}, v{T+1}')
                            a(f'v_mul_f32 v{d+1}, v{T}, v{T+2}')
                        else:
                            a(f'v_fmac_f32 v{d}, v{T}, v{T+1}')
                            a(f'v_fmac_f32 v{d+1}, v{T}, v{T+2}')
        return f
    def ph3():
        for m in ('quad_perm:[1,0,3,2] row_mask:0xf', 'quad_perm:[2,3,0,1] row_mask:0xf', 'row_half_mirror row_mask:0xf', 'row_mirror row_mask:0xf',
                  'row_bcast:15 row_mask:0xa', 'row_bcast:31 row_mask:0xc'):
            for j in range(16):
                a(f'v_add_f32_dpp v{AG+j}, v{AG+j}, v{AG+j} {m} bank_mask:0xf')
        for j in range(16): a(f'v_readlane_b32 s{sT+8+j}, v{AG+j}, 63')
        a('s_nop 1')
        for f in range(8):
            a(f'v_mov_b32 v{T}, s{sT+8+f}')
            rne_bf16(a, T, T)
            silu_bf16(a, T+1, T, T+2)
            a(f'v_mov_b32 v{T}, s{sT+16+f}')
            rne_bf16(a, T, T)
            a(f'v_mul_f32 v{T}, v{T}, v{T+1}')
            rne_bf16(a, G+f, T)
    def ph4():
        for f in range(8):
            for j in range(4):
                a(f'v_lshlrev_b32 v{T+1}, 16, v{D+4*f+j}')
                a(f'v_and_b32 v{T+2}, 0xffff0000, v{D+4*f+j}')
                d = AG + 2*j
                if f == 0:
                    a(f'v_mul_f32 v{d}, v{G+f}, v{T+1}')
                    a(f'v_mul_f32 v{d+1}, v{G+f}, v{T+2}')
                else:
                    a(f'v_fmac_f32 v{d}, v{G+f}, v{T+1}')
                    a(f'v_fmac_f32 v{d+1}, v{G+f}, v{T+2}')
        a(f'v_lshlrev_b32 v{T}, 2, v{vLane}')
        a(f's_mov_b32 s{sT}, {WS_Y}')
        for j in range(8):
            a.vmem(f'buffer_atomic_add_f32 v{AG+j}, v{T}, {srdLow}, s{sT} offen offset:{j*256}', 'fat')
    return [ph0, ph1, ph2(0, 4), ph2(4, 8), ph3, ph4]

def gen_ffn(name='ffn_kernel'):
    a = Asm()
    a(f'''
    s_cmp_ge_u32 s2, 56
    s_cbranch_scc1 FFN_END
    s_load_dwordx4 s[32:35], s[0:1], {A_WG}
    s_load_dwordx2 s[36:37], s[0:1], {A_WD}
    s_load_dwordx2 s[24:25], s[0:1], {A_WS}
    v_lshrrev_b32 v2, 6, v0
    v_and_b32 v1, 63, v0
    s_nop 0
    v_readfirstlane_b32 s28, v2
    v_lshlrev_b32 v2, 4, v1
    s_lshl_b32 s29, s2, 2
    s_add_u32 s29, s29, s28
    s_waitcnt lgkmcnt(0)
    ''')
    srd(a, 4, 32, 33, 512*1792*2)
    srd(a, 8, 34, 35, 512*1792*2)
    srd(a, 12, 36, 37, 512*1792*2)
    srd(a, 16, 24, 25, WS_LOW_SIZE)
    ph = ffn_job(a, 8, 29, 40, 's[16:19]', 's[4:7]', 's[8:11]', 's[12:15]', 1, 2)
    ph[0]()
    a.wait_vm('fkey')
    ph[1]()
    a('s_waitcnt vmcnt(0)'); a.vm = []
    for p in ph[2:]: p()
    a.label('FFN_END')
    a('s_endpgm')
    return kernel_text(name, a.text(), vgpr=136, sgpr=80)
if __name__ == '__main__':
    t = gen_ffn(); check_hazards(t); print(len(t.split('\n')))
```

```python
from common import *

def ln_ops(T, sT):
    a = Asm()
    XP, WR, X, M, V, t0, t1, t2 = T, T+4, T+8, T+16, T+17, T+18, T+19, T+20
    for j in range(4):
        a(f'v_lshlrev_b32 v{X+2*j}, 16, v{XP+j}')
        a(f'v_and_b32 v{X+2*j+1}, 0xffff0000, v{XP+j}')
    a(f'v_add_f32 v{M}, v{X}, v{X+1}')
    for j in range(2, 8): a(f'v_add_f32 v{M}, v{M}, v{X+j}')
    wave_sum(a, M, sT)
    a(f'v_mul_f32 v{M}, 0x3b000000, v{M}')
    a(f'v_sub_f32 v{t0}, v{X}, v{M}')
    a(f'v_mul_f32 v{V}, v{t0}, v{t0}')
    for j in range(1, 8):
        a(f'v_sub_f32 v{t0}, v{X+j}, v{M}')
        a(f'v_fmac_f32 v{V}, v{t0}, v{t0}')
    wave_sum(a, V, sT)
    a(f'v_mul_f32 v{V}, 0x3b000000, v{V}')
    rne_bf16(a, V, V)
    a(f'v_add_f32 v{V}, 0x3727c5ac, v{V}')
    rne_bf16(a, V, V)
    a(f'v_sqrt_f32 v{V}, v{V}')
    a('s_nop 0')
    rne_bf16(a, V, V)
    a(f'v_rcp_f32 v{V}, v{V}')
    rne_bf16(a, M, M)
    for j in range(8):
        a(f'v_sub_f32 v{X+j}, v{X+j}, v{M}')
    for j in range(4):
        a(f'v_cvt_pk_bf16_f32 v{XP+j}, v{X+2*j}, v{X+2*j+1}')
    for j in range(4):
        a(f'v_lshlrev_b32 v{X+2*j}, 16, v{XP+j}')
        a(f'v_and_b32 v{X+2*j+1}, 0xffff0000, v{XP+j}')
    for j in range(8):
        a(f'v_mul_f32 v{X+j}, v{X+j}, v{V}')
    for j in range(4):
        a(f'v_cvt_pk_bf16_f32 v{XP+j}, v{X+2*j}, v{X+2*j+1}')
    a(f'v_mov_b32 v{M}, 0')
    for j in range(4):
        a(f'v_lshlrev_b32 v{t0}, 16, v{XP+j}')
        a(f'v_lshlrev_b32 v{t1}, 16, v{WR+j}')
        a(f'v_fmac_f32 v{M}, v{t0}, v{t1}')
        a(f'v_and_b32 v{t0}, 0xffff0000, v{XP+j}')
        a(f'v_and_b32 v{t1}, 0xffff0000, v{WR+j}')
        a(f'v_fmac_f32 v{M}, v{t0}, v{t1}')
    wave_sum(a, M, sT)
    rne_bf16(a, M, M)
    a(f'v_ashrrev_i32 v{t0}, 31, v{M}')
    a(f'v_or_b32 v{t0}, 0x80000000, v{t0}')
    a(f'v_xor_b32 v{M}, v{M}, v{t0}')
    a(f'v_and_b32 v{M}, 0xffff0000, v{M}')
    a(f'v_or_b32 v{M}, s33, v{M}')
    return [l.strip() for l in a.lines], XP, M

def gen_k1(name='kv_kernel', prof=False):
    a = Asm()
    nst = [0]
    def stamp():
        if prof:
            a(f's_memtime s[{60+2*nst[0]}:{61+2*nst[0]}]'); nst[0] += 1
    END = 'K1_END'
    LNT = 232
    a(f'''
    s_cmp_ge_u32 s2, 256
    s_cbranch_scc1 {END}
    s_load_dwordx2 s[4:5], s[0:1], {A_CKV}
    s_load_dwordx4 s[32:35], s[0:1], {A_WUK}
    s_load_dwordx2 s[16:17], s[0:1], {A_X}
    s_load_dwordx2 s[20:21], s[0:1], {A_WR}
    s_load_dwordx2 s[24:25], s[0:1], {A_WS}
    ''')
    stamp()
    if prof: a('s_memrealtime s[98:99]')
    a(f'''
    v_lshrrev_b32 v2, 6, v0
    v_and_b32 v1, 63, v0
    s_nop 0
    v_readfirstlane_b32 s28, v2
    s_and_b32 s29, s2, 7
    s_lshl_b32 s29, s29, 2
    s_lshr_b32 s30, s2, 3
    s_and_b32 s31, s30, 3
    s_add_u32 s29, s29, s31          ; h
    s_lshr_b32 s30, s2, 5            ; rb
    v_lshlrev_b32 v10, 4, v1         ; lane*16
    ''')
    a(f'''
    v_lshrrev_b32 v11, 3, v1         ; l>>3
    v_lshlrev_b32 v2, 10, v11        ; row*1024
    v_and_b32 v60, 7, v1             ; l&7
    v_lshrrev_b32 v61, 4, v1         ; l>>4
    v_xor_b32 v62, v60, v61
    v_lshl_add_u32 v63, v62, 4, v2
    v_xor_b32 v62, 4, v62
    v_lshl_add_u32 v3, v62, 4, v2
    v_add_u32 v3, {8192-1024}, v3
    v_mov_b32 v2, v63
    v_lshrrev_b32 v4, 2, v1
    v_lshlrev_b32 v4, 13, v4
    v_and_b32 v60, 3, v1
    v_lshl_add_u32 v4, v60, 4, v4
    ''')
    a(f'''
    s_lshl_b32 s40, s28, 12
    s_add_u32 s40, s40, 65536
    s_lshl_b32 s56, s30, 18          ; rb*256KB
    s_and_b32 s42, s28, 1
    s_lshl_b32 s42, s42, 14
    s_add_u32 s41, s56, s42          ; + (w&1)*16K
    s_lshr_b32 s42, s28, 1           ; w>>1
    s_lshl_b32 s43, s42, 15
    s_add_u32 s43, s43, s41          ; base1
    s_lshl_b32 s44, s42, 7
    s_add_u32 s44, s44, s41          ; base2
    s_lshl_b32 s57, s28, 7
    s_add_u32 s56, s56, s57
    s_lshl_b32 s45, s28, 11
    s_and_b32 s46, s28, 3
    s_lshl_b32 s47, s46, 6
    s_lshl_b32 s48, s29, 8
    s_add_u32 s47, s47, s48
    s_lshl_b32 s48, s30, 16
    s_lshl_b32 s49, s46, 11
    s_add_u32 s48, s48, s49
    s_lshl_b32 s36, s2, 3
    s_add_u32 s36, s36, s28
    s_lshl_b32 s37, s36, 10
    s_cmp_lt_u32 s28, 4
    s_mov_b32 s38, {WS_K}
    s_cselect_b32 s38, s38, {WS_V}
    s_lshl_b32 s39, s29, 19
    s_add_u32 s38, s38, s39
    s_cmp_lt_u32 s28, 4
    s_waitcnt lgkmcnt(0)
    s_cselect_b32 s8, s32, s34
    s_cselect_b32 s9, s33, s35
    ''')
    srd(a, 8, 8, 9, 512*4096*2)
    srd(a, 4, 4, 5, 2048*512*2)
    def dma_c(s):
        if s < 8: a(f's_add_u32 s50, s43, {s*128}')
        else:
            i, u = (s-8) >> 1, (s-8) & 1
            a(f's_add_u32 s50, s44, {(4+i)*32768 + u*512}')
        a(f's_add_u32 m0, s45, {(s%4)*16384}')
        a('s_nop 0')
        a.vmem('buffer_load_dwordx4 v2, s[4:7], s50 offen lds', ('C', s))
        a.vmem('buffer_load_dwordx4 v3, s[4:7], s50 offen offset:1024 lds', ('C', s))
    def dma_c_blk(rt, half):
        third = rt % 3
        a(f's_add_u32 s50, s56, {rt*32768 + half*16384}')
        a(f's_add_u32 m0, s40, {third*32768 + half*2048}')
        a('s_nop 0')
        a.vmem('buffer_load_dwordx4 v2, s[4:7], s50 offen lds', ('CB', rt))
        a.vmem('buffer_load_dwordx4 v3, s[4:7], s50 offen offset:1024 lds', ('CB', rt))
    def dma_w_piece(s, ks):
        k = 4*s + ks
        a(f's_add_u32 s50, s47, {k*16*8192}')
        a(f's_add_u32 m0, s40, {(s%3)*32768 + ks*1024}')
        a('s_nop 0')
        a.vmem('buffer_load_dwordx4 v4, s[8:11], s50 offen lds', ('W', s))
    def dma_w(s):
        for ks in range(4): dma_w_piece(s, ks)
    dma_w(0); dma_c(0)
    srd(a, 16, 16, 17, 2048*512*2)
    srd(a, 20, 20, 21, 512*2)
    a(f'''
    s_add_u32 s12, s24, s38
    s_addc_u32 s13, s25, 0
    ''')
    srd(a, 12, 12, 13, 512*1024)
    srd(a, 24, 24, 25, WS_LOW_SIZE)
    dma_w(1); dma_c(1)
    a.vmem(f'buffer_load_dwordx4 {vr(LNT,4)}, v10, s[16:19], s37 offen', 'x')
    a.vmem(f'buffer_load_dwordx4 {vr(LNT+4,4)}, v10, s[20:23], 0 offen', 'x')
    a(f'''
    v_and_b32 v60, 31, v1
    v_lshrrev_b32 v61, 5, v1
    v_bfe_u32 v62, v1, 1, 3
    v_xor_b32 v62, v62, v61
    v_lshlrev_b32 v60, 7, v60
    ''')
    for ks in range(4):
        a(f'v_xor_b32 v63, {2*ks}, v62')
        a(f'v_lshl_add_u32 v{5+ks}, v63, 4, v60')
    a(f'''
    v_lshrrev_b32 v60, 5, v1
    v_lshlrev_b32 v60, 9, v60        ; (g>>1)*512
    v_bfe_u32 v61, v1, 2, 2
    v_lshl_add_u32 v60, v61, 6, v60
    v_bfe_u32 v61, v1, 4, 1
    v_lshl_add_u32 v60, v61, 5, v60
    v_and_b32 v61, 3, v1
    v_lshl_add_u32 v60, v61, 3, v60
    v_add_u32 v9, s40, v60
    v_add_u32 v11, 0x10000, v9
    ''')
    a(f'''
    v_lshrrev_b32 v60, 1, v1
    v_lshlrev_b32 v60, 10, v60
    v_and_b32 v61, 1, v1
    v_lshl_add_u32 v60, v61, 9, v60
    s_lshr_b32 s58, s36, 5
    s_lshl_b32 s58, s58, 15
    s_and_b32 s59, s36, 31
    s_lshl_b32 s59, s59, 4
    s_add_u32 s58, s58, s59
    s_lshl_b32 s59, s36, 2
    s_add_u32 s59, s59, {WS_R}
    v_mov_b32 v61, 0
    s_sub_u32 s33, 2047, s36
    ''')
    a(f'''
    s_cmp_gt_u32 s36, 1
    s_cbranch_scc1 K1_NOZ
    v_mov_b32 v12, 0
    v_mov_b32 v13, 0
    v_mov_b32 v14, 0
    v_mov_b32 v15, 0
    s_lshl_b32 s50, s36, 10
    s_add_u32 s50, s50, {WS_Y}
    buffer_store_dwordx4 v[12:15], v10, s[24:27], s50 offen
    s_waitcnt vmcnt(0)
K1_NOZ:
    ''')
    a('s_cmp_ge_u32 s28, 4')
    a('s_cbranch_scc1 K1_V')
    vm0, lg0 = list(a.vm), list(a.lg)
    for variant in ('K', 'V'):
        a.vm, a.lg = list(vm0), list(lg0)
        nst[0] = 1
        if variant == 'V': a.label('K1_V')
        FR, ACC, WF, PK = 28, 64, 128, 12
        def blk(b):
            s, bi = b >> 2, b & 3
            if s < 8: return dict(s=s, bi=bi, rt=bi, kc=s, acc=bi, first=(s == 0), last=(s == 7))
            i, u = (s-8) >> 1, (s-8) & 1
            return dict(s=s, bi=bi, rt=4+i, kc=4*u+bi, acc=i, first=(u == 0 and bi == 0), last=(u == 1 and bi == 3))
        win = [0]
        def read_frag(m):
            if m >= 256: return
            B = blk(m >> 2); ks = m & 3
            if B['s'] < 10: addr = (B['s'] % 4)*16384 + B['bi']*4096
            else: addr = 65536 + (B['rt'] % 3)*32768 + B['kc']*4096
            wb = addr & ~0xffff
            if wb != win[0]:
                assert ks == 0
                d = wb - win[0]
                for j in range(4):
                    a(f'v_add_u32 v{5+j}, {d & 0xffffffff:#x}, v{5+j}')
                win[0] = wb
            a.lds(f'ds_read_b128 {vr(FR+4*(m%8),4)}, v{5+ks} offset:{addr - wb}', ('F', m >> 2))
        def read_w(s, j):
            k = 4*s + (j >> 1)
            off = (s % 3)*32768 + (j >> 1)*1024 + (j & 1)*256
            av = 9
            if off >= 65536: off -= 65536; av = 11
            a.lds(f'ds_read_b64_tr_b16 {vr(WF+4*k+2*(j&1),2)}, v{av} offset:{off}', ('WF', s))
        def barrier(s):
            tags = [('C', s), ('W', s)]
            if s == 10: tags += [('CB', 5), ('CB', 6), ('CB', 7)]
            a.wait_vm(tags)
            a('s_barrier')
            stamp()
        pend = []
        npk = [0]
        def sched_epi(rt, acci, t0):
            acc = ACC + 16*acci; pk = PK + 8*(npk[0] % 2); npk[0] += 1
            for j in range(8):
                pend.append((t0 + j//2, (lambda j=j: a(f'v_cvt_pk_bf16_f32 v{pk+j}, v{acc+2*j}, v{acc+2*j+1}'))))
            def st(hh):
                a(f's_add_u32 s51, s48, {rt*8192}')
                a.vmem(f'buffer_store_dwordx4 {vr(pk+4*hh,4)}, v10, s[12:15], s51 offen offset:{hh*1024} sc1', 'st')
            pend.append((t0 + 3, lambda: st(0)))
            pend.append((t0 + 8, lambda: st(1)))
        for rt, acci, t0 in [(0, 0, 123), (1, 1, 138), (2, 2, 152), (4, 0, 166), (3, 3, 182), (5, 1, 198), (6, 2, 230), (7, 3, 262)]:
            sched_epi(rt, acci, t0)
        ln, XP, RV = ln_ops(LNT, 52)
        ln = [l for l in ln if not l.startswith('s_nop')]
        lnq = list(ln)
        barrier(0)
        for j in range(8): read_w(0, j)
        for m in range(8): read_frag(m)
        dmaq = []
        for k2 in range(4): dmaq.append(lambda k2=k2: dma_w_piece(2, k2))
        dmaq.append(lambda: dma_c(2)); dmaq.append(lambda: dma_c(3))
        ln_started = False
        for m in range(256):
            B = blk(m >> 2); ks = m & 3; s = B['s']
            if m % 16 == 8 and s + 1 <= 10:
                barrier(s + 1)
                S = s + 1
                if S + 2 < 8:
                    for k2 in range(4): dmaq.append(lambda S=S, k2=k2: dma_w_piece(S + 2, k2))
                if 2 <= S <= 7: dmaq.append(lambda S=S: dma_c(S + 2))
                if 6 <= S <= 8:
                    dmaq.append(lambda S=S: dma_c_blk(S - 1, 0)); dmaq.append(lambda S=S: dma_c_blk(S - 1, 1))
            if ks == 0:
                tags = [('F', m >> 2)]
                if s < 8: tags.append(('WF', s))
                a.wait_lg(tags)
            acc = vr(ACC + 16*B['acc'], 16)
            w = vr(WF + 4*(4*B['kc'] + ks), 4); f = vr(FR + 4*(m % 8), 4)
            cin = '0' if (B['first'] and ks == 0) else acc
            if variant == 'K': a(f'v_mfma_f32_32x32x16_bf16 {acc}, {w}, {f}, {cin}')
            else: a(f'v_mfma_f32_32x32x16_bf16 {acc}, {f}, {w}, {cin}')
            read_frag(m + 8)
            if m % 16 >= 8 and s + 1 < 8: read_w(s + 1, m % 16 - 8)
            if dmaq: dmaq.pop(0)()
            if m >= 25 and lnq:
                if not ln_started:
                    a.wait_vm('x'); ln_started = True
                n = 0
                while lnq and n < 3:
                    op = lnq[0]
                    dep = ('dpp' in op or 'readlane' in op or (op.startswith(('v_mov_b32', 'v_add_f32')) and ' s5' in op))
                    prev_tr = n > 0 and last.startswith(('v_sqrt', 'v_rcp'))
                    if n > 0 and ('dpp' in op or prev_tr or ('readlane' in op and 'readlane' not in last) or (op.startswith('v_mov_b32') and ' s5' in op)): break
                    a(op); last = lnq.pop(0); n += 1
                if not lnq:
                    a.vmem(f'buffer_store_dwordx4 {vr(XP,4)}, v60, s[24:27], s58 offen', 'st')
                    a('s_mov_b64 exec, 1')
                    a.vmem(f'buffer_store_dword v{RV}, v61, s[24:27], s59 offen', 'st')
                    a('s_mov_b64 exec, -1')
                    ln_done_m = m
            for at, fn in [p for p in pend if p[0] <= m]:
                fn()
            pend[:] = [p for p in pend if p[0] > m]
        assert ln_done_m < 88, ln_done_m
        a('s_nop 7'); a('s_nop 3')
        for at, fn in sorted(pend, key=lambda p: p[0]): fn()
        if prof:
            stamp()
            a('s_waitcnt vmcnt(0)')
            stamp()
            a('s_memrealtime s[96:97]')
            a('s_waitcnt lgkmcnt(0)')
            for i in range(nst[0]):
                a(f's_sub_u32 s59, s{60+2*i}, s60')
                a(f'v_writelane_b32 v28, s59, {i}')
            a('s_sub_u32 s59, s96, s98')
            a(f'v_writelane_b32 v28, s59, 31')
            a(f'''
            s_lshl_b32 s59, s2, 3
            s_add_u32 s59, s59, s28
            s_lshl_b32 s59, s59, 7
            s_add_u32 s59, s59, 0x240000
            v_lshlrev_b32 v29, 2, v1
            s_mov_b64 exec, 0xffffffff
            buffer_store_dword v28, v29, s[24:27], s59 offen
            ''')
        a('s_endpgm')
    a.label(END)
    a('s_endpgm')
    return kernel_text(name, a.text(), vgpr=256, sgpr=102)

if __name__ == '__main__':
    t = gen_k1()
    check_hazards(t)
    print(len(t.split('\n')))
```

```python
from common import *
import struct
def f2u(x): return struct.unpack('<I', struct.pack('<f', x))[0]
QSCALE = 1.4426950408889634 / (128 ** 0.5)

Q, S0, S1, NM, KF, VF, O = 16, 48, 64, 80, 96, 128, 160
XNF = 96
QACC = [48, 64, 80, 224]
WQF = 16
K0OFF = 131072
MASKS = 64

def gen_k2(name='attn_kernel', prof=False, opts={}):
    a = Asm()
    nobar = opts.get('nobar', False)
    novalu = opts.get('novalu', False)
    nords = opts.get('nords', False)
    END = 'K2_END'
    nst = [0]
    def stamp():
        if prof:
            a(f's_memtime s[44:45]')
            a('s_waitcnt lgkmcnt(0)')
            a('s_sub_u32 s44, s44, s46')
            a(f'v_writelane_b32 v255, s44, {nst[0]}'); nst[0] += 1
            a.lg = []
    a(f'''
    s_cmp_ge_u32 s2, 256
    s_cbranch_scc1 {END}
    s_load_dwordx2 s[4:5], s[0:1], {A_WQ}
    s_load_dwordx2 s[24:25], s[0:1], {A_WS}
    ''')
    if prof:
        a('s_memtime s[46:47]'); a('s_memrealtime s[98:99]')
    a(f'''
    v_lshrrev_b32 v2, 6, v0
    v_and_b32 v1, 63, v0
    s_nop 0
    v_readfirstlane_b32 s28, v2      ; w
    s_and_b32 s29, s2, 7
    s_lshl_b32 s29, s29, 2
    s_lshr_b32 s30, s2, 3
    s_and_b32 s31, s30, 3
    s_add_u32 s29, s29, s31          ; h
    s_lshr_b32 s30, s2, 5            ; p
    v_lshlrev_b32 v2, 4, v1          ; lane*16
    s_and_b32 s31, s28, 3            ; r
    s_sub_u32 s34, 15, s30           ; jB
    s_cmp_lt_u32 s28, 4
    s_cselect_b32 s32, s34, s30      ; j
    s_lshl_b32 s32, s32, 2
    s_add_u32 s32, s32, s31          ; T
    s_lshr_b32 s33, s32, 1
    s_lshl_b32 s34, s34, 1
    s_add_u32 s34, s34, 2            ; NB
    v_lshrrev_b32 v10, 2, v1
    v_lshlrev_b32 v10, 13, v10
    v_and_b32 v11, 3, v1
    v_lshl_add_u32 v10, v11, 4, v10
    s_lshl_b32 s36, s29, 8           ; h*256
    s_lshl_b32 s37, s28, 17          ; w*16 rows*8192
    s_add_u32 s36, s36, s37
    s_lshl_b32 s37, s28, 12          ; w*4096 lds
    s_lshl_b32 s38, s32, 15
    s_waitcnt lgkmcnt(0)
    ''')
    srd(a, 4, 4, 5, 512*4096*2)
    srd(a, 8, 24, 25, WS_LOW_SIZE)
    def dma_wq(c, db):
        a(f's_add_u32 s40, s36, {c*8*16*8192 + db*64}')
        a(f's_add_u32 m0, s37, {c*32768 + db*1024}')
        a('s_nop 0')
        a.vmem('buffer_load_dwordx4 v10, s[4:7], s40 offen lds', ('W', c))
    def ld_xn(ks):
        if ks % 4 == 0: a(f's_add_u32 s41, s38, {ks*1024}')
        a.vmem(f'buffer_load_dwordx4 {vr(XNF+4*ks,4)}, v2, s[8:11], s41 offen offset:{(ks%4)*1024}', ('X', ks))
    for db in range(4): dma_wq(0, db)
    for ks in range(8): ld_xn(ks)
    a(f'''
    s_lshl_b32 s39, s29, 19
    s_add_u32 s40, s39, {WS_K}
    s_add_u32 s12, s24, s40
    s_addc_u32 s13, s25, 0
    s_add_u32 s40, s39, {WS_V}
    s_add_u32 s16, s24, s40
    s_addc_u32 s17, s25, 0
    s_add_u32 s20, s24, {WS_CTX}
    s_addc_u32 s21, s25, 0
    s_and_b32 s13, s13, 0xffff
    s_lshl_b32 s14, s34, 14
    s_mov_b32 s15, 0x00020000
    s_and_b32 s17, s17, 0xffff
    s_lshl_b32 s18, s34, 14
    s_mov_b32 s19, 0x00020000
    s_and_b32 s21, s21, 0xffff
    s_mov_b32 s22, {2048*4096*2}
    s_mov_b32 s23, 0x00020000
    ''')
    for db in range(4): dma_wq(1, db)
    a(f'''
    v_lshrrev_b32 v8, 5, v1
    v_lshlrev_b32 v8, 9, v8
    v_bfe_u32 v11, v1, 2, 2
    v_lshl_add_u32 v8, v11, 6, v8
    v_bfe_u32 v11, v1, 4, 1
    v_lshl_add_u32 v8, v11, 5, v8
    v_and_b32 v11, 3, v1
    v_lshl_add_u32 v8, v11, 3, v8
    v_add_u32 v9, 0x10000, v8
    v_add_u32 v12, {K0OFF}, v2
    v_mov_b32 v13, 0xf149f2ca        ; -1e30
    s_lshl_b32 s42, s31, 12
    s_lshl_b32 s43, s31, 12
    ''')
    for r in range(16):
        kr = (r & 3) + 8*(r >> 2)
        m = 0
        for l in range(64):
            if kr + 4*(l >> 5) <= (l & 31): m |= 1 << l
        a(f's_mov_b32 s{MASKS+2*r}, {m & 0xffffffff:#x}')
        a(f's_mov_b32 s{MASKS+2*r+1}, {m >> 32:#x}')
    a('s_cmp_ge_u32 s28, 4')
    a('s_cbranch_scc1 K2_A')
    vm0, lg0 = list(a.vm), list(a.lg)

    def dma_k0():
        ops = []
        def first():
            a(f's_add_u32 m0, s43, {K0OFF}')
            a('s_nop 0')
            a.vmem('buffer_load_dwordx4 v2, s[12:15], s42 offen lds', 'K0')
        ops.append(first)
        return ops
    def mfma(d, x, y, c):
        a(f'v_mfma_f32_32x32x16_bf16 {vr(d,16)}, {vr(x,4)}, {vr(y,4)}, {c if isinstance(c,str) else vr(c,16)}')

    def slot(S, idx):
        if 1 <= idx <= 16: a(f'v_add_f32 v4, v4, v{S+idx-1}')
        if idx >= 2 and idx % 2 == 0:
            k = (idx - 2) // 2
            d = S + k if k < 4 else S + 8 + (k - 4)
            a(f'v_cvt_pk_bf16_f32 v{d}, v{S+idx-2}, v{S+idx-1}')
        if idx < 16: a(f'v_exp_f32 v{S+idx}, v{S+idx}')
    def slots_batch(S, lo, hi):
        for i in range(lo, hi): a(f'v_exp_f32 v{S+i}, v{S+i}')
        for idx in range(lo, hi):
            if idx >= 1: a(f'v_add_f32 v4, v4, v{S+idx-1}')
            if idx >= 2 and idx % 2 == 0:
                k = (idx - 2) // 2
                d = S + k if k < 4 else S + 8 + (k - 4)
                a(f'v_cvt_pk_bf16_f32 v{d}, v{S+idx-2}, v{S+idx-1}')
    RD = dict(enumerate(opts.get('rd', [2,1,2,1,2,0,0,0])))
    def mask_block():
        for r in range(16):
            a(f'v_cndmask_b32 v{NM+r}, v13, v6, s[{MASKS+2*r}:{MASKS+2*r+1}]')

    for role in ('B', 'A'):
        a.vm, a.lg = list(vm0), list(lg0)
        nst[0] = 0
        isA = role == 'A'
        if isA: a.label('K2_A')
        def dma_group_ops(slot_static=None, tag=None):
            ops = []
            def p(i):
                def f():
                    if i == 0:
                        if slot_static is None: a('s_add_u32 m0, s43, s48')
                        else: a(f's_add_u32 m0, s43, {slot_static*32768}')
                        a('s_nop 0')
                    if i == 4:
                        a('s_add_u32 m0, m0, 16384')
                        a('s_add_u32 s42, s42, 16384')
                    srdn = 's[16:19]' if i < 4 else 's[12:15]'
                    a.vmem(f'buffer_load_dwordx4 v2, {srdn}, s42 offen offset:{(i%4)*1024} lds', tag)
                return f
            return [p(i) for i in range(8)]
        fill = []
        for ks in range(8, 16): fill.append(lambda ks=ks: ld_xn(ks))
        for db in range(4): fill.append(lambda db=db: dma_wq(2, db))
        for ks in range(16, 24): fill.append(lambda ks=ks: ld_xn(ks))
        for db in range(4): fill.append(lambda db=db: dma_wq(3, db))
        for ks in range(24, 32): fill.append(lambda ks=ks: ld_xn(ks))
        if isA:
            def k0p(i):
                def f():
                    a(f's_add_u32 m0, s43, {K0OFF}')
                    a('s_nop 0')
                    a.vmem(f'buffer_load_dwordx4 v2, s[12:15], s42 offen offset:{i*1024} lds', 'K0')
                return f
            for i in range(4): fill.append(k0p(i))
        def read_wq(m):
            if m >= 128: return
            off = m*1024; av = 8
            if off >= 65536: off -= 65536; av = 9
            a.lds(f'ds_read_b64_tr_b16 {vr(WQF+4*(m%8),2)}, v{av} offset:{off}', ('WF', m >> 1))
            a.lds(f'ds_read_b64_tr_b16 {vr(WQF+4*(m%8)+2,2)}, v{av} offset:{off+256}', ('WF', m >> 1))
        def qbar(c):
            tags = [('W', c)]
            if c == 3: tags.append('K0')
            a.wait_vm(tags)
            a('s_barrier')
        qbar(0)
        stamp()
        for m in range(7): read_wq(m)
        krd = [(VF + 4*i, i*1024) for i in range(8)] + [(KF + 4*i, 8192 + i*1024) for i in range(8)]
        for m in range(128):
            ks, db = m >> 2, m & 3
            if m % 32 == 25 and m < 96:
                c = m // 32 + 1
                qbar(c)
                if isA and c >= 2: fill += dma_group_ops(c - 2, ('G', c - 2))
            if m % 2 == 0: a.wait_lg(('WF', m >> 1))
            if db == 0: a.wait_vm(('X', ks))
            mfma(QACC[db], WQF + 4*(m % 8), XNF + 4*ks, '0' if ks == 0 else QACC[db])
            read_wq(m + 7)
            if fill: fill.pop(0)()
            if m >= 112 and krd:
                d, off = krd.pop(0)
                a.lds(f'ds_read_b128 {vr(d,4)}, v12 offset:{off}', 'K0F')
        assert not fill and not krd
        stamp()
        for i in range(64):
            if i < 60: a(f'v_mov_b32 v{O+i}, 0')
        a('v_mov_b32 v4, 0')
        a('v_mov_b32 v6, 0')
        a(f's_mov_b32 s40, {f2u(QSCALE):#x}')
        for i in range(60, 64): a(f'v_mov_b32 v{O+i}, 0')
        for db in range(4):
            for j in range(16): a(f'v_mul_f32 v{QACC[db]+j}, s40, v{QACC[db]+j}')
            for j in range(8): a(f'v_cvt_pk_bf16_f32 v{Q+8*db+j}, v{QACC[db]+2*j}, v{QACC[db]+2*j+1}')
        for r in range(16): a(f'v_mov_b32 v{NM+r}, 0')
        L = a.uid('K2L')
        a('s_cmp_lg_u32 s32, 0')
        a(f's_cbranch_scc1 {L}')
        mask_block()
        a.label(L)
        a.wait_lg('K0F')
        a('s_nop 1')
        for dc in range(8): mfma(S0, VF + 4*dc, Q + 4*dc, NM if dc == 0 else S0)
        a('s_mov_b32 s35, 0')
        a('s_mov_b32 s49, 0')
        a('s_mov_b32 s48, 0x18000')
        a('s_nop 7'); a('s_nop 1')
        a(f'v_max3_f32 v5, v{S0}, v{S0+1}, v{S0+2}')
        for j in range(3, 15, 2): a(f'v_max3_f32 v5, v5, v{S0+j}, v{S0+j+1}')
        a(f'v_max_f32 v5, v5, v{S0+15}')
        a('v_mov_b32 v7, v5')
        a('s_nop 1')
        a('v_permlane32_swap_b32 v5, v7')
        a('s_nop 1')
        a('v_max_f32 v5, v5, v7')
        a('v_sub_f32 v6, 0, v5')
        for r in range(16):
            a(f'v_mov_b32 v{NM+r}, v6')
            a(f'v_add_f32 v{S0+r}, v{S0+r}, v6')
        slots_batch(S0, 0, 5)
        stamp()
        LOOP, BODY, TAIL, TEVEN, EPI = [f'K2_{role}_{x}' for x in ('LOOP', 'BODY', 'TAIL', 'TEVEN', 'EPI')]
        if isA:
            a.wait_vm(('G', 0))
            if not nobar: a('s_barrier')
            for f in dma_group_ops(2, ('G', 2)): f()
            a(f's_branch {BODY}')
        a.label(LOOP)
        if isA: a('s_waitcnt vmcnt(16) lgkmcnt(0)')
        else: a('s_waitcnt lgkmcnt(0)')
        if not nobar: a('s_barrier')
        a.label(BODY)
        a('v_add_u32 v3, s49, v2')
        a('s_cmp_eq_u32 s35, s33')
        a(f's_cbranch_scc1 {TAIL}')
        def seg(kind, S_out=None, Afr=None, Pin=None, rd=None, rdoff=None, slots=None, extra=None, first_wait=True):
            nrd = 0
            for g in range(8):
                if g == 0 and first_wait: a('s_waitcnt lgkmcnt(4)')
                if g == 4 and first_wait: a(f's_waitcnt lgkmcnt({nrd})')
                if kind == 'QK':
                    mfma(S_out, Afr + 4*g, Q + 4*g, NM if g == 0 else S_out)
                else:
                    c, db = g >> 2, g & 3
                    mfma(O + 16*db, Afr + 4*g, Pin + 8*c, O + 16*db)
                if slots and not novalu: slots(g)
                if rd is not None and not nords:
                    for _ in range(RD[g]):
                        a(f'ds_read_b128 {vr(rd+4*nrd,4)}, v3 offset:{rdoff(nrd)}'); nrd += 1
                if extra: extra(g)
        vofs = lambda base: (lambda i: base + (2*(i & 3) + (i >> 2))*1024)
        kofs = lambda base: (lambda i: base + i*1024)
        def pv_slots(X, Y):
            def f(g):
                if g <= 3: slot(X, 13 + g)
                if g >= 3 and Y is not None: slot(Y, g - 3)
            return f
        qk_slots = lambda Y: (lambda g: slot(Y, 5 + g))
        def dma_extra():
            ops = dma_group_ops(None, 'G') if isA else []
            st = {'ops': ops}
            def f(g):
                if st['ops'] and g >= 4: st['ops'].pop(0)()
            return f
        def adv():
            a('s_add_u32 s35, s35, 1')
            a('s_add_u32 s49, s49, 0x8000')
            a('s_and_b32 s49, s49, 0x1ffff')
            if isA:
                a('s_add_u32 s48, s48, 0x8000')
                a('s_and_b32 s48, s48, 0x1ffff')
        de = dma_extra()
        seg('QK', S_out=S1, Afr=KF, rd=VF, rdoff=vofs(0), slots=qk_slots(S0), extra=de, first_wait=False)
        seg('PV', Afr=VF, Pin=S0, rd=KF, rdoff=kofs(16384), slots=pv_slots(S0, S1), extra=de)
        adv()
        L = a.uid('K2L')
        a('s_lshl_b32 s40, s35, 1')
        a('s_cmp_lg_u32 s40, s32')
        a(f's_cbranch_scc1 {L}')
        mask_block()
        a('s_nop 0')
        a.label(L)
        seg('QK', S_out=S0, Afr=KF, rd=VF, rdoff=vofs(8192), slots=qk_slots(S1))
        seg('PV', Afr=VF, Pin=S1, rd=KF, rdoff=kofs(24576), slots=pv_slots(S1, S0))
        a(f's_branch {LOOP}')
        a.label(TAIL)
        a('s_bitcmp0_b32 s32, 0')
        a(f's_cbranch_scc1 {TEVEN}')
        mask_block()
        a('s_nop 1')
        de = dma_extra()
        seg('QK', S_out=S1, Afr=KF, rd=VF, rdoff=vofs(0), slots=qk_slots(S0), extra=de, first_wait=False)
        seg('PV', Afr=VF, Pin=S0, rd=KF, rdoff=vofs(8192), slots=pv_slots(S0, S1), extra=de)
        slots_batch(S1, 5, 13)
        a('s_waitcnt lgkmcnt(0)')
        def tail_slots(X):
            def f(g):
                if g <= 3: slot(X, 13 + g)
                if g == 3: a('s_nop 1')
            return f
        seg('PV', Afr=KF, Pin=S1, slots=tail_slots(S1), first_wait=False)
        a(f's_branch {EPI}')
        a.label(TEVEN)
        for i in range(8): a(f'ds_read_b128 {vr(VF+4*i,4)}, v3 offset:{vofs(0)(i)}')
        if isA:
            for f in dma_group_ops(None, 'G'): f()
        slots_batch(S0, 5, 13)
        a('s_waitcnt lgkmcnt(0)')
        seg('PV', Afr=VF, Pin=S0, slots=tail_slots(S0), first_wait=False)
        a.label(EPI)
        stamp()
        def loader_iter():
            L1, L2 = a.uid('K2L'), a.uid('K2L')
            a('s_add_u32 s40, s35, 2')
            a('s_cmp_ge_u32 s40, s34')
            a(f's_cbranch_scc1 {L1}')
            a('s_waitcnt vmcnt(16)')
            a(f's_branch {L2}')
            a.label(L1)
            a('s_waitcnt vmcnt(0)')
            a.label(L2)
            if not nobar: a('s_barrier')
            else: a('s_sleep 16')
            L3 = a.uid('K2L')
            a('s_add_u32 s40, s35, 3')
            a('s_cmp_ge_u32 s40, s34')
            a(f's_cbranch_scc1 {L3}')
            for f in dma_group_ops(None, 'G'): f()
            a.label(L3)
            adv()
        if isA:
            adv()
            loader_iter()
        else:
            a('s_nop 7'); a('s_nop 3')
        a('v_mov_b32 v7, v4')
        a('s_nop 1')
        a('v_permlane32_swap_b32 v4, v7')
        a('s_nop 1')
        a('v_add_f32 v4, v4, v7')
        a('v_rcp_f32 v5, v4')
        a('s_lshl_b32 s40, s32, 18')
        a('s_lshl_b32 s41, s29, 13')
        a('s_add_u32 s40, s40, s41')
        a('s_add_u32 s41, s40, 4096')
        for f in range(8):
            b = O + 8*f
            for j in range(8): a(f'v_mul_f32 v{b+j}, v{b+j}, v5')
            for j in range(4): a(f'v_cvt_pk_bf16_f32 v{b+j}, v{b+2*j}, v{b+2*j+1}')
            a(f'buffer_store_dwordx4 {vr(b,4)}, v2, s[20:23], s{40 + f//4} offen offset:{(f%4)*1024} sc1')
        if isA:
            LL, LE = 'K2_A_LD', 'K2_A_LDE'
            a.label(LL)
            a('s_cmp_ge_u32 s35, s34')
            a(f's_cbranch_scc1 {LE}')
            loader_iter()
            a(f's_branch {LL}')
            a.label(LE)
        if prof:
            stamp()
            a('s_waitcnt vmcnt(0)')
            stamp()
            a('s_memrealtime s[96:97]')
            a('s_waitcnt lgkmcnt(0)')
            a('s_sub_u32 s44, s96, s98')
            a(f'v_writelane_b32 v255, s44, 31')
            a(f'''
            s_lshl_b32 s44, s2, 3
            s_add_u32 s44, s44, s28
            s_lshl_b32 s44, s44, 7
            s_add_u32 s44, s44, 0x280000
            v_lshlrev_b32 v254, 2, v1
            s_mov_b64 exec, 0xffffffff
            buffer_store_dword v255, v254, s[8:11], s44 offen
            ''')
        a('s_endpgm')
    a.label(END)
    a('s_endpgm')
    return kernel_text(name, a.text(), vgpr=256, sgpr=102)

if __name__ == '__main__':
    t = gen_k2()
    check_hazards(t)
    print(len(t.split('\n')))
```

```python
from common import *
from ffn import *

def gen_k3(name='out_kernel', prof=False):
    a = Asm()
    CF, WF, ACC = 64, 32, 128
    XV, XNV, YV = 16, 20, 24
    a(f'''
    s_cmp_ge_u32 s2, 256
    s_cbranch_scc1 K3_END
    s_load_dwordx2 s[4:5], s[0:1], {A_WO}
    s_load_dwordx2 s[24:25], s[0:1], {A_WS}
    s_load_dwordx2 s[16:17], s[0:1], {A_X}
    s_load_dwordx2 s[20:21], s[0:1], {A_OUT}
    v_lshrrev_b32 v2, 6, v0
    v_and_b32 v1, 63, v0
    s_nop 0
    v_readfirstlane_b32 s28, v2      ; w
    v_lshlrev_b32 v2, 4, v1          ; lane*16
    s_and_b32 s29, s2, 7
    s_lshl_b32 s29, s29, 2
    s_lshr_b32 s30, s2, 6
    s_add_u32 s29, s29, s30
    s_lshr_b32 s30, s2, 3
    s_and_b32 s30, s30, 7            ; mb
    v_lshrrev_b32 v3, 3, v1
    v_lshlrev_b32 v3, 10, v3
    v_and_b32 v4, 7, v1
    v_lshl_add_u32 v3, v4, 4, v3
    v_add_u32 v4, {8192-1024}, v3
    s_lshl_b32 s31, s28, 19          ; w*512 rows*1024
    s_lshl_b32 s32, s30, 7
    s_add_u32 s31, s31, s32
    s_lshl_b32 s32, s28, 14
    s_lshl_b32 s33, s29, 19
    s_lshl_b32 s34, s28, 15
    s_add_u32 s33, s33, s34
    s_add_u32 s34, s33, 0x40000      ; qt1
    s_waitcnt lgkmcnt(0)
    ''')
    srd(a, 4, 4, 5, 4096*512*2)
    a(f'''
    s_add_u32 s8, s24, {WS_CTX}
    s_addc_u32 s9, s25, 0
    ''')
    srd(a, 8, 8, 9, 2048*4096*2)
    def issue(kc):
        a(f's_add_u32 s36, s31, {kc*16384}')
        a(f's_add_u32 m0, s32, {(kc%8)*2048}')
        if kc % 4 == 0:
            a(f's_add_u32 s37, s33, {kc*1024}')
            a(f's_add_u32 s38, s34, {kc*1024}')
        else: a('s_nop 0')
        a.vmem('buffer_load_dwordx4 v3, s[4:7], s36 offen lds', ('W', kc))
        a.vmem('buffer_load_dwordx4 v4, s[4:7], s36 offen offset:1024 lds', ('W', kc))
        for qt in range(2):
            a.vmem(f'buffer_load_dwordx4 {vr(CF+8*(kc%8)+4*qt,4)}, v2, s[8:11], s{37+qt} offen offset:{(kc%4)*1024}', ('C', kc))
    for kc in range(8): issue(kc)
    a(f's_mov_b32 s39, {WS_SEL}')
    a('s_load_dword s40, s[24:25], s39')
    srd(a, 12, 24, 25, WS_LOW_SIZE)
    srd(a, 16, 16, 17, 2048*512*2)
    srd(a, 20, 20, 21, 2048*512*2)
    a(f'''
    v_lshrrev_b32 v5, 5, v1
    v_lshlrev_b32 v5, 9, v5          ; hf*4*128
    v_bfe_u32 v6, v1, 2, 2
    v_lshl_add_u32 v5, v6, 7, v5     ; + e*128
    v_bfe_u32 v6, v1, 4, 1
    v_lshl_add_u32 v5, v6, 5, v5     ; + (g&1)*32
    v_and_b32 v6, 1, v1
    v_lshl_add_u32 v5, v6, 4, v5     ; c bit0 -> *16
    v_bfe_u32 v6, v1, 1, 1
    v_lshl_add_u32 v5, v6, 3, v5     ; c bit1 -> *8
    v_add_u32 v5, s32, v5
    ''')
    a(f'''
    s_lshr_b32 s41, s28, 2           ; mt
    s_bfe_u32 s42, s28, 0x10001      ; qt
    s_and_b32 s43, s28, 1            ; half
    s_lshl_b32 s44, s29, 1
    s_add_u32 s44, s44, s42
    s_lshl_b32 s45, s30, 2
    s_lshl_b32 s46, s41, 1
    s_add_u32 s45, s45, s46
    s_add_u32 s45, s45, s43
    s_lshl_b32 s46, s44, 15
    s_lshl_b32 s47, s45, 10
    s_add_u32 s47, s47, s46
    s_lshl_b32 s48, s45, 5
    s_add_u32 s48, s48, s46
    v_and_b32 v7, 31, v1
    v_lshlrev_b32 v8, 10, v7
    v_lshrrev_b32 v9, 5, v1
    v_lshl_add_u32 v8, v9, 4, v8     ; q*1024 + hf*16
    s_lshl_b32 s49, s44, 5
    v_add_u32 v7, s49, v7
    v_lshlrev_b32 v9, 2, v9          ; hf*4
    s_lshl_b32 s50, s45, 3
    s_add_u32 s50, s50, {WS_Y}       ; Y + (m0/8)*4
    ''')
    def rdw(kc):
        for mt in range(2):
            for u in range(2):
                a.lds(f'ds_read_b64_tr_b16 {vr(WF+8*(kc%2)+4*mt+2*u,2)}, v5 offset:{(kc%8)*2048 + mt*64 + u*1024}', ('WF', kc))
    a('s_waitcnt lgkmcnt(0)')
    a.wait_vm(('W', 0))
    rdw(0)
    for kc in range(32):
        if kc + 1 < 32:
            a.wait_vm(('W', kc + 1))
            rdw(kc + 1)
        else: a.wait_vm(('C', kc))
        a.wait_lg(('WF', kc))
        for mt in range(2):
            for qt in range(2):
                acc = vr(ACC + 16*(2*mt + qt), 16)
                a(f'v_mfma_f32_32x32x16_bf16 {acc}, {vr(WF+8*(kc%2)+4*mt,4)}, {vr(CF+8*(kc%8)+4*qt,4)}, {"0" if kc == 0 else acc}')
        if kc + 8 < 32: issue(kc + 8)
        if kc == 24:
            a.vmem(f'buffer_load_dwordx4 {vr(XV,4)}, v8, s[16:19], s48 offen', 'x')
            a.vmem(f'buffer_load_dwordx4 {vr(XNV,4)}, v2, s[12:15], s47 offen', 'x')
            for j in range(8):
                a.vmem(f'buffer_load_dword v{YV+j}, v9, s[12:15], s50 offen offset:{j*256}', 'x')
    a('v_add_u32 v10, s32, v2')
    a('s_nop 7'); a('s_nop 3')
    for i in range(16):
        a.lds(f'ds_write_b128 v10, {vr(ACC+4*i,4)} offset:{i*1024}', 'wr')
    a(f'''
    s_lshl_b32 s36, s28, 11
    v_add_u32 v10, s36, v2
    v_add_u32 v11, 0x10000, v10
    ''')
    a(f'''
    s_and_b32 s51, s40, 0x7ff
    s_sub_u32 s51, 2047, s51         ; idx
    s_and_b32 s52, s40, 0xffff0000
    s_ashr_i32 s53, s52, 31
    s_not_b32 s53, s53
    s_or_b32 s53, s53, 0x80000000
    s_xor_b32 s52, s52, s53
    s_and_b32 s52, s52, 0xffff0000
    v_mov_b32 v12, s52
    v_mul_f32 v12, {f2u(-LOG2E):#x}, v12
    v_exp_f32 v12, v12
    s_nop 0
    v_add_f32 v12, 1.0, v12
    v_rcp_f32 v12, v12
    s_nop 0
    ''')
    rne_bf16(a, 12, 12)
    a.wait_all(vm=False)
    a('s_barrier')
    R = 64
    for w in range(8):
        for q in range(2):
            av = 10 if w < 4 else 11
            a.lds(f'ds_read_b128 {vr(R+8*w+4*q,4)}, v{av} offset:{(w%4)*16384 + q*1024}', ('R', w))
        if w == 5: a.wait_lg(('R', 0))
    a.wait_vm('x')
    a('v_cmp_eq_u32 vcc, s51, v7')
    B = 48
    for j in range(8):
        rne_bf16(a, YV+j, YV+j)
        a(f'v_mul_f32 v{YV+j}, v{YV+j}, v12')
        rne_bf16(a, YV+j, YV+j)
        a(f'v_cndmask_b32 v{YV+j}, 0, v{YV+j}, vcc')
        if j % 2 == 0: a(f'v_lshlrev_b32 v{B+j}, 16, v{XNV+j//2}')
        else: a(f'v_and_b32 v{B+j}, 0xffff0000, v{XNV+j//2}')
        a(f'v_add_f32 v{B+j}, v{B+j}, v{YV+j}')
        rne_bf16(a, B+j, B+j)
        silu_bf16(a, B+j, B+j, 13)
        if j % 2 == 0: a(f'v_lshlrev_b32 v{B+8+j}, 16, v{XV+j//2}')
        else: a(f'v_and_b32 v{B+8+j}, 0xffff0000, v{XV+j//2}')
    a.wait_all(vm=False)
    for w in range(1, 8):
        for j in range(8): a(f'v_add_f32 v{R+j}, v{R+j}, v{R+8*w+j}')
    for j in range(8):
        rne_bf16(a, R+j, R+j)
        a(f'v_mul_f32 v{R+j}, v{R+j}, v{B+j}')
        rne_bf16(a, R+j, R+j)
        a(f'v_add_f32 v{R+j}, v{R+j}, v{B+8+j}')
    for j in range(4): a(f'v_cvt_pk_bf16_f32 v{R+j}, v{R+2*j}, v{R+2*j+1}')
    a(f'buffer_store_dwordx4 {vr(R,4)}, v8, s[20:23], s48 offen')
    a.label('K3_END')
    a('s_endpgm')
    return kernel_text(name, a.text(), vgpr=192, sgpr=80)

def parts():
    return [('ffn_kernel', gen_ffn(), 56, 256, 0), ('out_kernel', gen_k3(), 256, 512, 131072)]
if __name__ == '__main__':
    t = gen_k3(); check_hazards(t); print(len(t.split('\n')))
```

```python
import sys
from common import *
import k1
HEADER = open('recurrent_scan__compressed_kv_cla__moe_arch_mod__prompt.s.ref').read().split('; Override launch')[0]
def build(parts, out):
    launches = ''
    body = '.amdgcn_target "amdgcn-amd-amdhsa--gfx950"\n'
    for name, text, grid, block, lds in parts:
        launches += f'; @launch kernel={name} grid=({grid},1,1) block=({block},1,1) lds={lds}\n'
        p = check_hazards(text)
        if p: print(f'!!! {name}: {len(p)} hazards')
        body += text
    open(out, 'w').write(HEADER + launches + body)
if __name__ == '__main__':
    parts = [('kv_kernel', k1.gen_k1(), 256, 512, 163840)]
    try:
        import k2
        parts.append(('attn_kernel', k2.gen_k2(), 256, 512, 163840))
    except ImportError: pass
    try:
        import k3
        parts += k3.parts()
    except ImportError: pass
    out = sys.argv[1] if len(sys.argv) > 1 else 'recurrent_scan__compressed_kv_cla__moe_arch_mod__prompt.s'
    build(parts, out)
```

```python
import sys
HDR = '''.amdgcn_target "amdgcn-amd-amdhsa--gfx950"
.text
'''
def kernel(name, body, vgpr=256, sgpr=64):
    return f'''
.globl {name}
.p2align 8
.type {name},@function
{name}:
{body}
s_endpgm
''', f'''
.section .rodata,"a"
.p2align 6
.amdhsa_kernel {name}
  .amdhsa_next_free_vgpr {vgpr}
  .amdhsa_next_free_sgpr {sgpr}
  .amdhsa_accum_offset {min(256,(vgpr+3)//4*4)}
  .amdhsa_group_segment_fixed_size 0
  .amdhsa_kernarg_size 112
  .amdhsa_user_sgpr_count 2
  .amdhsa_user_sgpr_kernarg_segment_ptr 1
  .amdhsa_system_sgpr_workgroup_id_x 1
.end_amdhsa_kernel
.text
'''
def pro():
    return '''
    s_load_dwordx2 s[4:5], s[0:1], 0
    s_load_dwordx2 s[6:7], s[0:1], 88
    s_waitcnt lgkmcnt(0)
    s_mov_b32 s8, s4
    s_mov_b32 s9, s5
    s_mov_b32 s10, 0x4000000
    s_mov_b32 s11, 0x00020000
    s_mov_b32 s12, s6
    s_mov_b32 s13, s7
    s_mov_b32 s14, 0x100000
    s_mov_b32 s15, 0x00020000
    v_lshrrev_b32 v1, 6, v0
    v_and_b32 v2, 63, v0          ; lane
    s_nop 1
    v_readfirstlane_b32 s16, v1   ; wave
'''
def epi(slot):
    return f'''
    s_memtime s[22:23]
    s_waitcnt lgkmcnt(0)
    s_sub_u32 s22, s22, s20
    v_mov_b32 v4, s22
    s_lshl_b32 s24, s2, 3
    s_add_u32 s24, s24, s16
    s_lshl_b32 s24, s24, 2
    s_add_u32 s24, s24, {slot*8192*4}
    v_mov_b32 v5, s24
    v_cmp_eq_u32 vcc, 0, v2
    s_and_saveexec_b64 s[26:27], vcc
    buffer_store_dword v4, v5, s[12:15], 0 offen
    s_waitcnt vmcnt(0)
'''
REP = 8
def k_load(name, slot, mode, lds=False):
    b = pro()
    b += '''
    s_lshr_b32 s17, s2, 3
    s_and_b32 s17, s17, 7          ; rb
    s_lshl_b32 s17, s17, 18        ; *256KB
    s_lshl_b32 s18, s16, 15        ; wave*32KB
    s_add_u32 s17, s17, s18
'''
    if mode == 'rowlane':
        b += '''
    v_and_b32 v3, 31, v2
    v_lshlrev_b32 v3, 10, v3
    v_lshrrev_b32 v4, 5, v2
    v_lshlrev_b32 v4, 4, v4
    v_add_u32 v3, v3, v4
'''
        offs = [kc*32 for kc in range(32)]
    elif mode == 'coal':
        b += '    v_lshlrev_b32 v3, 4, v2\n'
        offs = [i*1024 for i in range(32)]
    elif mode == 'r8x128':
        b += '''
    v_lshrrev_b32 v3, 3, v2
    v_lshlrev_b32 v3, 10, v3
    v_and_b32 v4, 7, v2
    v_lshlrev_b32 v4, 4, v4
    v_add_u32 v3, v3, v4
'''
        offs = [(i&3)*8192 + (i>>2)*128 for i in range(32)]
    elif mode == 'r4x256':
        b += '''
    v_lshrrev_b32 v3, 4, v2
    v_lshlrev_b32 v3, 10, v3
    v_and_b32 v4, 15, v2
    v_lshlrev_b32 v4, 4, v4
    v_add_u32 v3, v3, v4
'''
        offs = [(i&7)*4096 + (i>>3)*256 for i in range(32)]
    elif mode == 'r16x64':
        b += '''
    v_lshrrev_b32 v3, 2, v2
    v_lshlrev_b32 v3, 10, v3
    v_and_b32 v4, 3, v2
    v_lshlrev_b32 v4, 4, v4
    v_add_u32 v3, v3, v4
'''
        offs = [(i&1)*16384 + (i>>1)*64 for i in range(32)]
    b += f'''
    s_mov_b32 s19, 0
    s_barrier
    s_memtime s[20:21]
    s_waitcnt lgkmcnt(0)
L_{name}:
'''
    for i, o in enumerate(offs):
        b += f'    s_add_u32 s28, s17, {o}\n'
        if lds:
            b += f'    s_lshl_b32 s29, s16, 14\n    s_add_u32 m0, s29, {(i%16)*1024}\n    s_nop 0\n'
            b += f'    buffer_load_dwordx4 v3, s[8:11], s28 offen lds\n'
        else:
            b += f'    buffer_load_dwordx4 v[{8+4*i}:{11+4*i}], v3, s[8:11], s28 offen\n'
    b += f'''
    s_waitcnt vmcnt(16)
    s_add_u32 s19, s19, 1
    s_cmp_lt_u32 s19, {REP}
    s_cbranch_scc1 L_{name}
    s_waitcnt vmcnt(0)
'''
    b += epi(slot)
    return kernel(name, b)

ks = []
names = []
slot = 0
for lds in (False, True):
    for mode in ('coal', 'rowlane', 'r8x128', 'r4x256', 'r16x64'):
        nm = f'mb_{mode}_{"lds" if lds else "reg"}_kernel'
        ks.append(k_load(nm, slot, mode, lds)); names.append(nm); slot += 1
out = ''
for n in names:
    out += f'; @launch kernel={n} grid=(256,1,1) block=(512,1,1) lds=131072\n'
out += HDR
for c, d in ks:
    out += c + d
open('mb1.s', 'w').write(out)
open('mb1.names', 'w').write('\n'.join(names))
```

```python
import sys
sys.path.insert(0, 'gen')
from mb1 import kernel, HDR, pro
def epi(slot):
    return f'''
    s_memtime s[22:23]
    s_memrealtime s[32:33]
    s_waitcnt lgkmcnt(0)
    s_sub_u32 s22, s22, s20
    s_sub_u32 s32, s32, s30
    v_mov_b32 v4, s22
    v_mov_b32 v5, s32
    s_lshl_b32 s24, s2, 3
    s_add_u32 s24, s24, s16
    s_lshl_b32 s24, s24, 3
    s_add_u32 s24, s24, {slot*8192*4}
    v_mov_b32 v6, s24
    v_cmp_eq_u32 vcc, 0, v2
    s_and_saveexec_b64 s[26:27], vcc
    buffer_store_dwordx2 v[4:5], v6, s[12:15], 0 offen
    s_waitcnt vmcnt(0)
'''
def k(name, slot, shape, rd_per, nexp, nadd, iters):
    b = pro()
    b += '''
    v_lshlrev_b32 v3, 4, v0
    s_lshl_b32 s17, s2, 13
'''
    for i in range(32):
        b += f'    s_add_u32 s28, s17, {i*8192*16}\n    buffer_load_dwordx4 v[{64+4*i}:{67+4*i}], v3, s[8:11], s28 offen\n'
    b += '    s_waitcnt vmcnt(0)\n'
    for i in range(8):
        b += f'    ds_write_b128 v3, v[{64+4*i}:{67+4*i}] offset:{i*8192}\n'
    for i in range(64):
        b += f'    v_mov_b32 v{192+i}, 0\n'
    for i in range(16):
        b += f'    v_mov_b32 v{8+i}, 0.5\n'
    b += f'''
    v_lshlrev_b32 v7, 4, v2
    s_waitcnt lgkmcnt(0)
    s_barrier
    s_mov_b32 s19, 0
    s_memtime s[20:21]
    s_memrealtime s[30:31]
    s_waitcnt lgkmcnt(0)
L_{name}:
'''
    N = 32
    e = 0
    for i in range(N):
        A = 64 + 4*((i) % 16); B = 128 + 4*((i*5) % 16)
        if shape == 32:
            c = 192 + 16*(i % 4)
            b += f'    v_mfma_f32_32x32x16_bf16 v[{c}:{c+15}], v[{A}:{A+3}], v[{B}:{B+3}], v[{c}:{c+15}]\n'
        else:
            for u in range(2):
                c = 192 + 4*((2*i+u) % 16)
                B2 = 128 + 4*((i*5 + u*3) % 16)
                b += f'    v_mfma_f32_16x16x32_bf16 v[{c}:{c+3}], v[{A}:{A+3}], v[{B2}:{B2+3}], v[{c}:{c+3}]\n'
                if u == 0 and nexp:
                    b += f'    v_exp_f32 v{24+(i%16)}, v{8+(i%16)}\n'
        if rd_per == 1 or (rd_per == 0.5 and i % 2 == 0):
            d = 64 + 4*((i + 8) % 16)
            b += f'    ds_read_b128 v[{d}:{d+3}], v7 offset:{(i*1024*2) % 65536}\n'
        if rd_per == 2:
            d = 64 + 4*((i + 8) % 16)
            b += f'    ds_read_b64_tr_b16 v[{d}:{d+1}], v7 offset:{(i*1024*2) % 65536}\n'
            b += f'    ds_read_b64_tr_b16 v[{d+2}:{d+3}], v7 offset:{(i*1024*2+8) % 65536}\n'
        if shape == 32:
            for _ in range(nexp):
                b += f'    v_exp_f32 v{24+(i%16)}, v{8+(i%16)}\n'
        for j in range(nadd):
            b += f'    v_add_f32 v{40+j}, v{40+j}, v{24+((i+8)%16)}\n'
        if rd_per and i % 4 == 3:
            b += f'    s_waitcnt lgkmcnt(4)\n'
    b += f'''
    s_add_u32 s19, s19, 1
    s_cmp_lt_u32 s19, {iters}
    s_cbranch_scc1 L_{name}
'''
    b += epi(slot)
    return kernel(name, b)
ks = []; names = []; slot = 0; out = ''
cfgs = []
for nthr in (512, 256):
    for shape in (32, 16):
        for rd, ne, na in ((0,0,0), (1,0,0), (0.5,0,0), (2,0,0), (1,1,2), (0.5,1,2), (0,1,2)):
            cfgs.append((nthr, shape, rd, ne, na))
for nthr, shape, rd, ne, na in cfgs:
    nm = f'mb3_t{nthr}_s{shape}_r{str(rd).replace(".","p")}_e{ne}_a{na}_kernel'
    iters = 16 if nthr == 512 else 32
    ks.append(k(nm, slot, shape, rd, ne, na, iters)); names.append(nm); slot += 1
    out += f'; @launch kernel={nm} grid=(256,1,1) block=({nthr},1,1) lds=131072\n'
out += HDR
for c, d in ks: out += c + d
open('mb3.s', 'w').write(out)
open('mb3.names', 'w').write('\n'.join(names))
```

```python
from mb1 import kernel, HDR, pro
from mb3 import epi
def k(name, slot, stride_log, rep):
    b = pro()
    b += f'''
    v_lshlrev_b32 v3, {stride_log}, v2
    s_and_b32 s18, s2, 63
    s_lshl_b32 s17, s18, 7
    s_lshl_b32 s18, s16, {stride_log+6}
    s_add_u32 s17, s17, s18
    s_lshr_b32 s18, s2, 6
    s_lshl_b32 s18, s18, 22
    s_add_u32 s17, s17, s18
    s_memtime s[20:21]
    s_memrealtime s[30:31]
    s_waitcnt lgkmcnt(0)
    buffer_load_dword v8, v3, s[8:11], s17 offen
    s_waitcnt vmcnt(0)
'''
    b += epi(slot)
    return kernel(name, b)
ks = []; names = []; out = ''
for i, (n, g) in enumerate((('g64', 64), ('g256', 256))):
    nm = f'mb9_{n}_kernel'
    ks.append(k(nm, i, 13, 1)); names.append(nm)
    out += f'; @launch kernel={nm} grid=({g},1,1) block=(512,1,1) lds=131072\n'
out += HDR
for c, d in ks: out += c + d
open('mb9.s', 'w').write(out)
open('mb9.names', 'w').write('\n'.join(names))
```
